```python
import torch

def _softmax(x, axis=-1):
    return torch.softmax(x, dim=axis)
def _gelu(x):
    return torch.nn.functional.gelu(x, approximate="tanh")
def _silu(x):
    return torch.nn.functional.silu(x)
def _sigmoid(x):
    return torch.sigmoid(x)
def _layernorm(x, axis=-1, eps=1e-5):
    m = x.mean(dim=axis, keepdim=True)
    v = x.var(dim=axis, keepdim=True, unbiased=False)
    return (x - m) / torch.sqrt(v + eps)
def _scatter_add(tgt, idx, src, axis=0):
    return tgt.clone().index_add_(axis, idx, src)
def _segment_sum(src, seg, n):
    out = torch.zeros((n,) + src.shape[1:], dtype=src.dtype)
    return out.index_add_(0, seg, src)
def _pad(x, pw):
    flat = tuple(v for pair in reversed(pw) for v in pair)
    return torch.nn.functional.pad(x, flat)

kernel_name = 'sequential_preLN__sliding_block_cached__mixer_token_mlp__decode'

def setup_inputs():

    _w = (lambda a: (lambda t: t.to(torch.bfloat16) if t.is_floating_point() else t)(torch.as_tensor(a)))
    def _A_setup():
        B, Sq, D = 1, 1, 640
        Hq, Hkv, Sk, Dh = 32, 32, 32768, 192
        assert Hq % Hkv == 0, (Hq, Hkv)
        return {
            "x": _w((lambda *s: torch.randn(*s, dtype=torch.bfloat16) * 0.05)(B, Sq, D)),
            "k_cache": _w((lambda *s: torch.randn(*s, dtype=torch.bfloat16) * 1.6)(B, Hkv, Sk, Dh)),
            "v_cache": _w((lambda *s: torch.randn(*s, dtype=torch.bfloat16) * 0.4)(B, Hkv, Sk, Dh)),
            "wq": _w((lambda *s: torch.randn(*s, dtype=torch.bfloat16) * 1.6)(D, Hq * Dh) * (D ** -0.5)),
            "wo": _w((lambda *s: torch.randn(*s, dtype=torch.bfloat16) * 0.4)(Hq * Dh, D) * ((Hq * Dh) ** -0.5)),
        }
    _A_in = _A_setup()

    def _B_setup():
        B, S, D, F = 1, 1, 640, 1536
        return {
            "x": _w((lambda *s: torch.randn(*s, dtype=torch.bfloat16) * 0.05)(B, S, D)),
            "w1": _w((lambda *s: torch.randn(*s, dtype=torch.bfloat16) * 3.2)(S, F) * (S ** -0.5)),
            "b1": _w((lambda *s: torch.randn(*s, dtype=torch.bfloat16) * 1.6)(F) * 0.02),
            "w2": _w((lambda *s: torch.randn(*s, dtype=torch.bfloat16) * 1.6)(F, S) * (F ** -0.5)),
            "b2": _w((lambda *s: torch.randn(*s, dtype=torch.bfloat16) * 1.6)(S) * 0.02),
        }
    _B_in = _B_setup()

    return {
        "A_x": _A_in["x"],
        "A_k_cache": _A_in["k_cache"],
        "A_v_cache": _A_in["v_cache"],
        "A_wq": _A_in["wq"],
        "A_wo": _A_in["wo"],
        "B_x": _B_in["x"],
        "B_w1": _B_in["w1"],
        "B_b1": _B_in["b1"],
        "B_w2": _B_in["w2"],
        "B_b2": _B_in["b2"],
    }

def reference(A_x, A_k_cache, A_v_cache, A_wq, A_wo, B_x, B_w1, B_b1, B_w2, B_b2):
    def _A_ref(x, k_cache, v_cache, wq, wo):
        B, Sq, D = x.shape
        Hq, Dh = 32, 192
        Hkv, Sk = k_cache.shape[1], k_cache.shape[2]
        W = min(4096, max(256, Sk // 4))
        rep = Hq // Hkv
        q = (lambda x, *d: x.permute(*d))((x @ wq).reshape(B, Sq, Hq, Dh), 0, 2, 1, 3)
        k = (lambda x, n, axis: torch.repeat_interleave(x, n, dim=axis))(k_cache[:, :, Sk - W:, :], rep, axis=1)
        v = (lambda x, n, axis: torch.repeat_interleave(x, n, dim=axis))(v_cache[:, :, Sk - W:, :], rep, axis=1)
        scores = torch.einsum("bhqd,bhkd->bhqk", q, k) * (Dh ** -0.5)
        p = _softmax(scores, axis=-1)
        o = torch.einsum("bhqk,bhkd->bhqd", p, v)
        return (lambda x, *d: x.permute(*d))(o, 0, 2, 1, 3).reshape(B, Sq, Hq * Dh) @ wo

    def _B_ref(x, w1, b1, w2, b2):
        B, S, D = x.shape
        h = _layernorm(x, axis=-1)
        u = torch.einsum("bsd,sf->bdf", h, w1) + b1
        u = _gelu(u)
        y = torch.einsum("bdf,fs->bds", u, w2) + b2
        return (lambda x, *d: x.permute(*d))(y, 0, 2, 1)

    x = A_x
    h = x + _A_ref(_layernorm(x, axis=-1), A_k_cache, A_v_cache, A_wq, A_wo)
    h2 = h + _B_ref(_layernorm(h, axis=-1), B_w1, B_b1, B_w2, B_b2)
    return h2
```

```python
NAME = "sequential_preLN__sliding_block_cached__mixer_token_mlp__decode"

HEADER_COMMENT = """; Kernarg layout (104 bytes, ptrs only, base s[0:1]):
"""

class Asm:
    def __init__(self):
        self.lines = []
        self.nlabel = 0
    def __call__(self, s=""):
        for ln in s.split("\n"):
            self.lines.append("    " + ln.strip() if ln.strip() and not ln.strip().endswith(":") else ln.strip())
    def label(self, name):
        self.lines.append(name + ":")
    def newlabel(self, base="L"):
        self.nlabel += 1
        return f"{base}_{self.nlabel}"
    def c(self, s):
        self.lines.append("    ; " + s)
    def text(self):
        return "\n".join(self.lines) + "\n"

def kernel_desc(name, vgpr, sgpr=102, accum=None):
    if accum is None:
        accum = (vgpr + 3) // 4 * 4
    return f""".section .rodata,"a"
.p2align 6
.amdhsa_kernel {name}
  .amdhsa_next_free_vgpr {vgpr}
  .amdhsa_next_free_sgpr {sgpr}
  .amdhsa_accum_offset {accum}
  .amdhsa_group_segment_fixed_size 0
  .amdhsa_kernarg_size 104
  .amdhsa_user_sgpr_count 2
  .amdhsa_user_sgpr_kernarg_segment_ptr 1
  .amdhsa_system_sgpr_workgroup_id_x 1
  .amdhsa_float_denorm_mode_32 3
  .amdhsa_float_denorm_mode_16_64 3
.end_amdhsa_kernel
"""

def single_kernel_file(body, grid, block, lds, vgpr, sgpr=102, accum=None):
    k = NAME + "_kernel"
    s = HEADER_COMMENT
    s += f"; @launch grid=({grid},1,1) block=({block},1,1) lds={lds}\n"
    s += '.amdgcn_target "amdgcn-amd-amdhsa--gfx950"\n.text\n'
    s += f".globl {k}\n.p2align 8\n.type {k},@function\n{k}:\n"
    s += body
    s += "    s_endpgm\n"
    s += kernel_desc(k, vgpr, sgpr, accum)
    return s

def multi_kernel_file(kernels):
    s = HEADER_COMMENT
    for k in kernels:
        s += f"; @launch kernel={k['name']} grid=({k['grid']},1,1) block=({k['block']},1,1) lds={k['lds']}\n"
    s += '.amdgcn_target "amdgcn-amd-amdhsa--gfx950"\n.text\n'
    seen = set()
    for k in kernels:
        if k['name'] in seen: continue
        seen.add(k['name'])
        n = k['name']
        s += f".globl {n}\n.p2align 8\n.type {n},@function\n{n}:\n" + k['body'] + "    s_endpgm\n"
    seen = set()
    for k in kernels:
        if k['name'] in seen: continue
        seen.add(k['name'])
        s += kernel_desc(k['name'], k['vgpr'], k.get('sgpr', 102), k.get('accum'))
    return s
```

```python
import re

TRANS = ("v_exp_f32","v_log_f32","v_rcp_f32","v_rsq_f32","v_sqrt_f32","v_sin_f32","v_cos_f32","v_rcp_iflag_f32")
def regs_of(tok):
    tok = tok.strip()
    tok = tok.lstrip('-')
    m = re.fullmatch(r"abs\((.*)\)", tok)
    if m: tok = m.group(1)
    tok = tok.strip('|')
    m = re.fullmatch(r"([vsa])(\d+)", tok)
    if m: return {(m.group(1), int(m.group(2)))}
    m = re.fullmatch(r"([vsa])\[(\d+):(\d+)\]", tok)
    if m: return {(m.group(1), i) for i in range(int(m.group(2)), int(m.group(3)) + 1)}
    if tok in ("vcc", "vcc_lo", "vcc_hi"): return {("s", "vcc")}
    if tok in ("exec", "exec_lo", "exec_hi"): return {("s", "exec")}
    if tok == "m0": return {("s", "m0")}
    return set()

class I:
    def __init__(self, line):
        self.line = line
        s = line.split(";")[0].strip()
        self.label = s.endswith(":")
        self.empty = (s == "") or s.startswith(".")
        self.mn = ""
        self.dst = set(); self.src = set()
        self.kind = "other"
        if self.label or self.empty: return
        parts = s.split(None, 1)
        mn = parts[0]; self.mn = mn
        rest = parts[1] if len(parts) > 1 else ""
        ops = []; cur = ""; depth = 0
        for ch in rest:
            if ch == "[": depth += 1
            if ch == "]": depth -= 1
            if ch == "," and depth == 0:
                ops.append(cur.strip()); cur = ""
            else: cur += ch
        if cur.strip(): ops.append(cur.strip())
        mods = ""
        if ops:
            last = ops[-1].split()
            ops[-1] = last[0] if last else ""
            mods = " ".join(last[1:])
        self.ops = ops; self.mods = mods
        self.dpp = ("_dpp" in mn) or any(k in mods for k in ("row_", "quad_perm", "wave_"))
        base = re.sub(r"_(e32|e64|dpp|sdwa)$", "", mn)
        self.base = base
        R = [regs_of(o) for o in ops]
        allsrc = lambda k: set().union(*R[k:]) if len(R) > k else set()
        if base.startswith("v_mfma") or base.startswith("v_smfmac"):
            self.kind = "mfma"; self.dst = R[0]; self.srcA = R[1]; self.srcB = R[2]; self.srcC = R[3]
            self.src = R[1] | R[2] | R[3]
            self.passes = 4 if "16x16x32" in base or "16x16x16" in base else (8 if ("32x32x16" in base or "32x32x8" in base or "16x16x4_f32" in base) else 16)
            self.sgemm = base.endswith("_f32") and ("x4_f32" in base or "x2_f32" in base or "x1_" in base)
        elif base.startswith("v_cmpx"):
            self.kind = "valu"; self.dst = R[0] | {("s", "exec")}; self.src = allsrc(1)
        elif base.startswith("v_cmp"):
            self.kind = "valu"; self.dst = R[0]; self.src = allsrc(1)
        elif base in ("v_readlane_b32", "v_readfirstlane_b32"):
            self.kind = "valu"; self.dst = R[0]; self.src = allsrc(1); self.readlane = True
        elif base.startswith("v_permlane"):
            self.kind = "valu"; self.dst = R[0] | R[1]; self.src = R[0] | R[1]; self.permlane = True
        elif base.startswith("v_"):
            self.kind = "valu"; self.dst = R[0]; self.src = allsrc(1)
            if base in ("v_fmac_f32", "v_dot2c_f32_bf16", "v_writelane_b32", "v_pk_fmac_f16", "v_accvgpr_write_b32") or base.startswith("v_dot2c") or base.startswith("v_fmac"):
                if base != "v_accvgpr_write_b32": self.src |= R[0]
            if base in ("v_add_co_u32", "v_sub_co_u32", "v_addc_co_u32", "v_subb_co_u32", "v_mad_u64_u32", "v_div_scale_f32"):
                self.dst = R[0] | R[1]; self.src = allsrc(2)
            if base == "v_cndmask_b32" and len(ops) == 3:
                self.src |= {("s", "vcc")}
            if self.dpp:
                self.src |= R[0]
        elif base.startswith("buffer_store") or base.startswith("global_store") or base.startswith("buffer_atomic") or base.startswith("global_atomic"):
            self.kind = "vmem"; self.src = allsrc(0); self.store = True
            if base.startswith("buffer_"): self.data = R[0]
            else: self.data = R[1]
            if "sc0" in mods and "atomic" in base: self.dst = R[0]
        elif base.startswith("buffer_load") or base.startswith("global_load"):
            self.kind = "vmem"; self.dst = R[0]; self.src = allsrc(1)
        elif base.startswith("buffer_") :
            self.kind = "vmem"
        elif base.startswith("ds_"):
            self.kind = "ds"
            if base.startswith("ds_read") or base.startswith("ds_bpermute") or base.startswith("ds_swizzle") or "_rtn" in base or base.startswith("ds_permute"):
                self.dst = R[0]; self.src = allsrc(1)
            else:
                self.src = allsrc(0)
        elif base.startswith("s_"):
            self.kind = "salu"
            if base.startswith("s_cmp") or base.startswith("s_cbranch") or base in ("s_waitcnt","s_barrier","s_nop","s_sleep","s_setprio","s_branch","s_endpgm"):
                self.src = allsrc(0)
            else:
                self.dst = R[0] if R else set(); self.src = allsrc(1)
                if "saveexec" in base: self.dst |= {("s", "exec")}
        self.trans = base in TRANS
        self.dot = base.startswith("v_dot")
    def states(self):
        if self.label or self.empty: return 0
        if self.mn == "s_nop":
            return int(self.ops[0], 0) + 1
        return 1

def vg(s): return {r for r in s if r[0] in ("v", "a")}
def sg(s): return {r for r in s if r[0] == "s"}

def need(p, c):
    n = 0
    if p.kind == "valu":
        pv = vg(p.dst); ps = sg(p.dst)
        if c.kind == "valu":
            if pv & vg(c.src):
                if c.dpp: n = max(n, 2)
                if getattr(c, "permlane", False): n = max(n, 2)
                if getattr(c, "readlane", False): n = max(n, 1)
                if p.trans and not c.trans: n = max(n, 1)
                if p.dot and not (c.base == p.base): n = max(n, 3)
                if p.dot and c.base == p.base:
                    if pv & (vg(c.src) - vg(c.dst)): n = max(n, 3)
                if "op_sel" in p.mods or "sdwa" in p.mn: n = max(n, 1)
            if p.dot and (pv & vg(c.dst)) and c.base != p.base: n = max(n, 3)
            if ps & sg(c.src):
                n = max(n, 4 if getattr(c, "readlane", False) and c.base == "v_readlane_b32" else 2)
            if ("s", "exec") in ps:
                n = max(n, 5 if c.dpp else 4 if (getattr(c, "readlane", False) or getattr(c, "permlane", False)) else 2)
        if c.kind == "mfma":
            if pv & vg(c.src): n = max(n, 2)
            if p.dot and pv & vg(c.src): n = max(n, 3)
            if ("s", "exec") in ps: n = max(n, 4)
        if c.kind == "vmem":
            if ps & sg(c.src): n = max(n, 5)
            if p.trans and pv & vg(c.src): n = max(n, 1)
            if p.dot and pv & vg(c.src): n = max(n, 3)
        if c.kind == "ds":
            if p.trans and pv & vg(c.src): n = max(n, 1)
            if p.dot and pv & vg(c.src): n = max(n, 3)
        if c.kind == "salu":
            if ps & sg(c.src): n = max(n, 1)
    if p.kind == "mfma":
        ps_ = p.passes
        tbl_valu = {2: 5, 4: 8, 8: 12, 16: 20}[ps_] if not p.sgemm else {2: 4, 4: 6, 8: 10, 16: 18}[ps_]
        if c.kind in ("valu", "vmem", "ds"):
            if p.dst & (vg(c.src) | vg(c.dst)): n = max(n, tbl_valu)
            if c.kind == "valu" and (p.srcC & vg(c.dst)): n = max(n, {2: 1, 4: 3, 8: 7, 16: 15}[ps_])
        if c.kind == "mfma":
            if p.dst & (c.srcA | c.srcB): n = max(n, tbl_valu)
            if p.dst & c.srcC:
                if p.dst == c.srcC and p.passes == c.passes: n = max(n, 2 if ps_ == 2 else 0)
                else: n = max(n, {2: 4, 4: 6, 8: 10, 16: 18}[ps_])
    if p.kind == "vmem" and getattr(p, "store", False):
        if len(p.data) >= 3 and c.kind == "valu" and (vg(p.data) & vg(c.dst)): n = max(n, 2)
        elif len(p.data) >= 3 and (vg(p.data) & vg(c.dst)): n = max(n, 1)
    if p.kind == "salu":
        if ("s", "m0") in p.dst and c.kind in ("vmem", "ds"): n = max(n, 1)
    return n

def fix(lines, window=24, report=False):
    out = []
    added = 0
    for ln in lines:
        c = I(ln)
        if c.label or c.empty:
            out.append(c); continue
        dist = 0; req = 0
        for p in reversed(out):
            if p.label or p.empty: continue
            n = need(p, c)
            if n > dist: req = max(req, n - dist)
            dist += p.states()
            if dist >= window: break
        while req > 0:
            k = min(req, 16)
            out.append(I(f"    s_nop {k-1}"))
            added += k
            req -= k
        out.append(c)
    if report: print("hazard: inserted", added, "wait states")
    return [i.line for i in out]
```

```python
import sys
sys.path.insert(0, "dev")
from asmlib import *
import hazard

QX = 0x10000
AX = 0x40000
YX = 0x80000
YB = 0x120000
STAMP = 0x200000
WS_SIZE = 0x400000
TAGMASK = 0x3FF

L_QP = 0x0000
L_QB = 0x2000
L_QFLAG = 0x2200
L_MW = 0x2240
L_ACC = 0x2280
L_XS = 0x2700
L_HS = 0x3100
L_RED = 0x3B00
LDS_BYTES = 0x3C00

LOG2E = 0x3FB8AA3B
SENT = 0xFFFFFFFF

class G:
    def __init__(self, stamps=False, intra="sc1", cross="sc1", spin=1 << 16, opts=None):
        self.a = Asm()
        self.stamps = stamps
        self.intra = intra
        self.cross = cross
        self.spin = spin
        self.nst = 0
        self.opts = opts or {}

    def stamp(self, i):
        if self.stamps:
            self.a(f"s_memrealtime s[{64+2*i}:{65+2*i}]")
    def rbf(self, x, t):
        a = self.a
        a(f"v_cvt_pk_bf16_f32 {t}, {x}, {x}")
        a(f"v_lshlrev_b32 {x}, 16, {t}")
    def rbf2(self, x, y, t):
        a = self.a
        a(f"v_cvt_pk_bf16_f32 {t}, {x}, {y}")
        a(f"v_lshlrev_b32 {x}, 16, {t}")
        a(f"v_and_b32 {y}, 0xffff0000, {t}")
    def allreduce(self, xs, t, op="add"):
        a = self.a
        ins = "v_add_f32" if op == "add" else "v_max_f32"
        for r in (8, 4, 2, 1):
            for x in xs:
                a(f"{ins}_dpp {x}, {x}, {x} row_ror:{r} row_mask:0xf bank_mask:0xf")
        self.xrow(xs, t, op)
    def xrow(self, xs, t, op="add", steps=("16", "32")):
        a = self.a
        ins = "v_add_f32" if op == "add" else "v_max_f32"
        for st in steps:
            for x, tt in zip(xs, t):
                a(f"v_mov_b32 {tt}, {x}")
            for x, tt in zip(xs, t):
                a(f"v_permlane{st}_swap_b32 {x}, {tt}")
            for x, tt in zip(xs, t):
                a(f"{ins} {x}, {x}, {tt}")
    def tagv(self, regs):
        for r in regs:
            self.a(f"v_and_or_b32 {r}, {r}, v15, s9")
    def check(self, granules, t0, t1):
        a = self.a
        first = True
        for g in granules:
            for k in (0, 2):
                a(f"v_xor_b32 {t1}, s9, {g[k]}")
                if first:
                    a(f"v_xor_b32 {t0}, s9, {g[k+1]}")
                    a(f"v_or_b32 {t0}, {t0}, {t1}")
                    first = False
                else:
                    a(f"v_xor_b32 v14, s9, {g[k+1]}")
                    a(f"v_or3_b32 {t0}, {t0}, {t1}, v14")
        a(f"v_and_b32 {t0}, {TAGMASK}, {t0}")
        a(f"v_cmp_ne_u32 vcc, 0, {t0}")
    def poll(self, name, emit_loads, granules, t0, t1, sleep=0):
        a = self.a
        a("s_mov_b32 s58, 0")
        a.label(f"L_{name}")
        emit_loads()
        a("s_waitcnt vmcnt(0)")
        self.check(granules, t0, t1)
        a(f"s_cbranch_vccz L_{name}_ok")
        a("s_add_u32 s58, s58, 1")
        if sleep: a(f"s_sleep {sleep}")
        a(f"s_cmp_lt_u32 s58, {self.spin}")
        a(f"s_cbranch_scc1 L_{name}")
        a.label(f"L_{name}_ok")

    def prologue(self):
        a = self.a
        a("s_cmp_ge_u32 s2, 256")
        a("s_cbranch_scc1 L_end")
        a("s_load_dwordx2 s[32:33], s[0:1], 0")
        a("s_load_dwordx2 s[24:25], s[0:1], 24")
        a("s_load_dwordx2 s[12:13], s[0:1], 8")
        a("s_load_dwordx2 s[20:21], s[0:1], 96")
        a("s_load_dwordx2 s[16:17], s[0:1], 16")
        a("s_load_dwordx2 s[28:29], s[0:1], 32")
        a("s_load_dwordx8 s[36:43], s[0:1], 48")
        a("s_load_dwordx2 s[44:45], s[0:1], 80")
        self.stamp(0)
        a("s_setprio 3")
        a("v_mov_b32 v11, v0")
        a("v_lshrrev_b32 v12, 6, v0")
        a("v_and_b32 v0, 63, v0")
        a("v_readfirstlane_b32 s4, v12")
        a("s_and_b32 s8, s2, 7")
        a("s_lshr_b32 s7, s2, 3")
        a("s_lshr_b32 s5, s7, 3")
        a("s_lshl_b32 s3, s8, 2")
        a("s_add_u32 s5, s5, s3")
        a("s_and_b32 s6, s7, 7")
        a("v_and_b32 v1, 15, v0")
        a("v_lshrrev_b32 v2, 4, v0")
        a("v_lshrrev_b32 v12, 5, v0")
        a("v_and_b32 v13, 31, v0")
        a("v_mul_u32_u24 v14, 12288, v12")
        a("v_mul_u32_u24 v13, 12, v13")
        a("v_add_u32 v14, v14, v13")
        a("v_lshlrev_b32 v12, 1, v12")
        a("v_lshlrev_b32 v13, 2, v0")
        a("s_mul_i32 s50, s6, 80")
        a("s_mul_i32 s51, s4, 10")
        a("s_add_u32 s50, s50, s51")
        a("s_lshl_b32 s51, s50, 1")
        a("s_mul_i32 s50, s50, 12288")
        a("s_mul_i32 s52, s5, 384")
        a("s_add_u32 s50, s50, s52")
        a("s_mul_i32 s46, s5, 12582912")
        a("s_lshl_b32 s52, s6, 9")
        a("s_lshl_b32 s53, s4, 6")
        a("s_add_u32 s52, s52, s53")
        a("s_add_u32 s52, s52, 28672")
        a("s_mul_i32 s52, s52, 384")
        a("s_add_u32 s46, s46, s52")
        a("s_add_u32 s47, s46, 6144")
        a("s_add_u32 s48, s46, 12288")
        a("s_add_u32 s49, s46, 18432")
        a("v_mul_u32_u24 v3, 1536, v2")
        a("v_lshrrev_b32 v4, 3, v1")
        a("v_cmp_eq_u32 vcc, 0, v4")
        a("v_mul_u32_u24 v4, 384, v4")
        a("v_and_b32 v5, 7, v1")
        a("v_lshl_add_u32 v4, v5, 4, v4")
        a("v_add_u32 v4, v4, v3")
        a("v_add_u32 v4, 256, v4")
        a("v_lshl_add_u32 v3, v1, 4, v3")
        a("v_cndmask_b32 v9, 0, 1.0, vcc")
        a("v_sub_f32 v10, 1.0, v9")
        a("v_and_b32 v6, 1, v1")
        a("v_cmp_eq_u32 vcc, 1, v6")
        a("v_mov_b32 v7, 0xffff")
        a("v_mov_b32 v8, 0xffff0000")
        a("v_cndmask_b32 v6, v7, v8, vcc")
        a("v_lshrrev_b32 v7, 1, v5")
        a("v_mov_b32 v16, v6")
        for w in range(4):
            a(f"v_cmp_eq_u32 vcc, {w}, v7")
            a(f"v_cndmask_b32 v{17+w}, 0, v16, vcc")
        for w in range(4):
            a(f"v_mov_b32 v{5+w}, v{17+w}")
        a("v_mov_b32 v15, 0xfffffc00")
        a("s_waitcnt lgkmcnt(0)")
        a("s_load_dword s10, s[20:21], 0")
        for (r, sz) in ((32, 1280), (24, 7864320), (12, 402653184), (16, 402653184), (20, WS_SIZE), (28, 7864320)):
            a(f"s_mov_b32 s{r+2}, {sz}")
            a(f"s_mov_b32 s{r+3}, 0x00020000")

    def qloads(self):
        a = self.a
        for j in range(5):
            a(f"buffer_load_dword v{64+j}, v13, s[32:35], 0 offen offset:{256*j}")
        for i in range(5):
            a(f"buffer_load_ushort v{69+i}, v12, s[32:35], s51 offen offset:{4*i}")
        for i in range(5):
            a(f"buffer_load_dwordx3 v[{76+4*i}:{78+4*i}], v14, s[24:27], s50 offen nt")
            if i < 4: a("s_add_u32 s50, s50, 24576")

    def kvloads(self, srd, groups):
        a = self.a
        for Gi in groups:
            base = 16 + 24 * Gi
            for r in range(4):
                a(f"buffer_load_dwordx4 v[{base+4*r}:{base+4*r+3}], v3, {srd}, s{46+Gi} offen offset:{384*r} nt")
            for t in range(2):
                a(f"buffer_load_dwordx4 v[{base+16+4*t}:{base+19+4*t}], v4, {srd}, s{46+Gi} offen offset:{768*t} nt")

    def ln_stats(self, xs, tag):
        a = self.a
        a(f"v_add_f32 v168, {xs[0]}, {xs[1]}")
        a(f"v_add_f32 v171, {xs[2]}, {xs[3]}")
        a(f"v_add_f32 v172, {xs[4]}, {xs[5]}")
        a(f"v_add_f32 v173, {xs[6]}, {xs[7]}")
        a(f"v_add_f32 v174, {xs[8]}, {xs[9]}")
        a("v_add_f32 v168, v168, v171")
        a("v_add_f32 v172, v172, v173")
        a("v_add_f32 v168, v168, v174")
        a("v_add_f32 v168, v168, v172")
        self.allreduce(["v168"], ["v171"])
        a("v_mul_f32 v168, 0x3acccccd, v168")
        for i in range(10):
            a(f"v_sub_f32 v{171+(i%2)}, {xs[i]}, v168")
            if i == 0:
                a("v_mul_f32 v169, v171, v171")
            elif i == 1:
                a("v_mul_f32 v170, v172, v172")
            else:
                a(f"v_fmac_f32 v{169+(i%2)}, v{171+(i%2)}, v{171+(i%2)}")
        a("v_add_f32 v169, v169, v170")
        self.allreduce(["v169"], ["v171"])
        a("v_mul_f32 v169, 0x3acccccd, v169")
        self.rbf2("v168", "v169", "v171")
        a("v_add_f32 v169, 0x3727c5ac, v169")
        self.rbf("v169", "v171")
        a("v_sqrt_f32 v169, v169")
        self.rbf("v169", "v171")
        a("v_rcp_f32 v170, v169")

    def ln_apply(self, xs, newton=True):
        a = self.a
        xs = list(xs)
        for x in xs:
            a(f"v_sub_f32 {x}, {x}, v168")
        for i in range(0, len(xs) - 1, 2):
            self.rbf2(xs[i], xs[i + 1], "v171")
        if len(xs) % 2: self.rbf(xs[-1], "v171")
        for x in xs:
            if newton:
                a(f"v_mul_f32 v172, {x}, v170")
                a(f"v_fma_f32 v173, -v172, v169, {x}")
                a(f"v_fma_f32 {x}, v173, v170, v172")
            else:
                a(f"v_mul_f32 {x}, {x}, v170")
        for i in range(0, len(xs) - 1, 2):
            self.rbf2(xs[i], xs[i + 1], "v171")
        if len(xs) % 2: self.rbf(xs[-1], "v171")

    def qphase(self, older):
        a = self.a
        a(f"s_waitcnt vmcnt({12 if older else 0})")
        xs = [f"v{96+i}" for i in range(10)]
        for j in range(5):
            a(f"v_lshlrev_b32 v{96+2*j}, 16, v{64+j}")
            a(f"v_and_b32 v{97+2*j}, 0xffff0000, v{64+j}")
        if not older:
            a("s_cmp_eq_u32 s4, 6")
            a("s_cbranch_scc0 L_noxs")
            a("v_lshlrev_b32 v171, 3, v0")
            for j in range(5):
                a(f"ds_write_b64 v171, v[{96+2*j}:{97+2*j}] offset:{L_XS + 512*j}")
            a.label("L_noxs")
            a("s_cmp_eq_u32 s4, 5")
            a("s_cbranch_scc0 L_noinit")
            a("v_mov_b32 v172, 0\nv_mov_b32 v173, 0\nv_mov_b32 v174, 0\nv_mov_b32 v175, 0")
            a("v_lshlrev_b32 v171, 4, v0")
            a(f"ds_write_b128 v171, v[172:175] offset:{L_ACC}")
            a("v_lshlrev_b32 v171, 2, v0")
            a(f"ds_write_b32 v171, v172 offset:{L_QFLAG}")
            a("v_mov_b32 v173, -1")
            a("s_mov_b64 exec, 0xff")
            a(f"ds_write_b32 v171, v173 offset:{L_MW}")
            a("s_mov_b64 exec, -1")
            a.label("L_noinit")
        self.ln_stats(xs, "q")
        rows = [f"v{69+i}" for i in range(5)]
        for r in rows:
            a(f"v_lshlrev_b32 {r}, 16, {r}")
        self.ln_apply(rows)
        for i in range(5):
            for k in range(3):
                w = 76 + 4 * i + k
                a(f"v_lshlrev_b32 v171, 16, v{w}")
                a(f"v_and_b32 v172, 0xffff0000, v{w}")
                if i == 0:
                    a(f"v_mul_f32 v{106+2*k}, v171, {rows[i]}")
                    a(f"v_mul_f32 v{107+2*k}, v172, {rows[i]}")
                else:
                    a(f"v_fmac_f32 v{106+2*k}, v171, {rows[i]}")
                    a(f"v_fmac_f32 v{107+2*k}, v172, {rows[i]}")
        acc = [f"v{106+k}" for k in range(6)]
        self.xrow(acc, [f"v{171+k}" for k in range(6)], steps=("32",))
        a("v_and_b32 v171, 31, v0")
        a("v_mul_u32_u24 v171, 24, v171")
        a("s_mul_i32 s52, s4, 768")
        a("v_add_u32 v171, s52, v171")
        for k in range(3):
            a(f"ds_write_b64 v171, v[{106+2*k}:{107+2*k}] offset:{L_QP + 8*k}")
        a("s_waitcnt lgkmcnt(0)")
        a("s_barrier")

    def qexchange(self):
        a = self.a
        a("s_add_u32 s9, s10, 1")
        a(f"s_and_b32 s9, s9, {TAGMASK}")
        a("s_mov_b32 exec_lo, -1\ns_mov_b32 exec_hi, 0xffff")
        a("v_lshlrev_b32 v171, 4, v0")
        for w in range(8):
            a(f"ds_read_b128 v[{64+4*w}:{67+4*w}], v171 offset:{L_QP + 768*w}")
        a("s_waitcnt lgkmcnt(0)")
        for k in range(4):
            a(f"v_add_f32 v{64+k}, v{64+k}, v{68+k}")
            a(f"v_add_f32 v{72+k}, v{72+k}, v{76+k}")
            a(f"v_add_f32 v{80+k}, v{80+k}, v{84+k}")
            a(f"v_add_f32 v{88+k}, v{88+k}, v{92+k}")
        for k in range(4):
            a(f"v_add_f32 v{64+k}, v{64+k}, v{72+k}")
            a(f"v_add_f32 v{80+k}, v{80+k}, v{88+k}")
        for k in range(4):
            a(f"v_add_f32 v{64+k}, v{64+k}, v{80+k}")
        self.tagv([f"v{64+k}" for k in range(4)])
        a("s_lshl_b32 s52, s5, 3")
        a("s_add_u32 s53, s52, s6")
        a("s_mul_i32 s53, s53, 768")
        a(f"s_add_u32 s53, s53, {QX}")
        a(f"buffer_store_dwordx4 v[64:67], v171, s[20:23], s53 offen {self.intra}")
        a("s_mul_i32 s52, s52, 768")
        a(f"s_add_u32 s52, s52, {QX}")
        a("s_add_u32 s53, s52, 3072")
        def loads():
            for j in range(8):
                so = "s52" if j < 4 else "s53"
                a(f"buffer_load_dwordx4 v[{68+4*j}:{71+4*j}], v171, s[20:23], {so} offen offset:{768*(j%4)} sc1")
        self.poll("qpoll", loads, [[f"v{68+4*j+k}" for k in range(4)] for j in range(8)], "v172", "v173", sleep=4)
        for k in range(4):
            a(f"v_add_f32 v{68+k}, v{68+k}, v{72+k}")
            a(f"v_add_f32 v{76+k}, v{76+k}, v{80+k}")
            a(f"v_add_f32 v{84+k}, v{84+k}, v{88+k}")
            a(f"v_add_f32 v{92+k}, v{92+k}, v{96+k}")
        for k in range(4):
            a(f"v_add_f32 v{68+k}, v{68+k}, v{76+k}")
            a(f"v_add_f32 v{84+k}, v{84+k}, v{92+k}")
        for k in range(4):
            a(f"v_add_f32 v{68+k}, v{68+k}, v{84+k}")
        a("v_cvt_pk_bf16_f32 v64, v68, v69")
        a("v_cvt_pk_bf16_f32 v65, v70, v71")
        a("v_lshlrev_b32 v171, 3, v0")
        a(f"ds_write_b64 v171, v[64:65] offset:{L_QB}")
        a("s_waitcnt lgkmcnt(0)")
        a("v_mov_b32 v172, 0\nv_mov_b32 v173, 1")
        a(f"ds_write_b32 v172, v173 offset:{L_QFLAG}")
        a("s_mov_b64 exec, -1")

    def qk(self, nm):
        a = self.a
        a("v_mov_b32 v172, 0")
        a("s_mov_b32 s58, 0")
        a.label(f"L_qw{nm}")
        a(f"ds_read_b32 v171, v172 offset:{L_QFLAG}")
        a("s_waitcnt lgkmcnt(0)")
        a("v_readfirstlane_b32 s52, v171")
        a("s_cmp_eq_u32 s52, 1")
        a(f"s_cbranch_scc1 L_qw{nm}_ok")
        a("s_sleep 2")
        a("s_add_u32 s58, s58, 1")
        a(f"s_cmp_lt_u32 s58, {self.spin*16}")
        a(f"s_cbranch_scc1 L_qw{nm}")
        a.label(f"L_qw{nm}_ok")
        self.stamp(2)
        a("v_lshlrev_b32 v171, 4, v1")
        a("v_and_b32 v172, 7, v1")
        a("v_lshlrev_b32 v172, 4, v172")
        a(f"ds_read_b128 v[128:131], v171 offset:{L_QB}")
        a(f"ds_read_b128 v[132:135], v172 offset:{L_QB+256}")
        a("s_waitcnt lgkmcnt(0)")
        for Gi in range(4):
            base = 16 + 24 * Gi
            a(f"s_waitcnt vmcnt({6*(3-Gi)})")
            acc = [f"v{168+r}" for r in range(4)]
            accB = ["v172", "v173"]
            for x in acc + accB: a(f"v_mov_b32 {x}, 0")
            for i in range(4):
                for r in range(4):
                    a(f"v_dot2c_f32_bf16 {acc[r]}, v{base+4*r+i}, v{128+i}")
                for t in range(2):
                    a(f"v_dot2c_f32_bf16 {accB[t]}, v{base+16+4*t+i}, v{132+i}")
            for r in range(4):
                a(f"v_fmac_f32 {acc[r]}, {accB[r>>1]}, v{9+(r&1)}")
            for rot in (8, 4, 2, 1):
                for r in range(4):
                    a(f"v_add_f32_dpp {acc[r]}, {acc[r]}, {acc[r]} row_ror:{rot} row_mask:0xf bank_mask:0xf")
            self.rbf2(acc[0], acc[1], "v174")
            self.rbf2(acc[2], acc[3], "v175")
            for r in range(4):
                a(f"v_mul_f32 {acc[r]}, 0x3d93cd3a, {acc[r]}")
            a(f"v_cvt_pk_bf16_f32 v174, {acc[0]}, {acc[1]}")
            a(f"v_cvt_pk_bf16_f32 v175, {acc[2]}, {acc[3]}")
            a(f"v_lshlrev_b32 v{112+4*Gi}, 16, v174")
            a(f"v_and_b32 v{113+4*Gi}, 0xffff0000, v174")
            a(f"v_lshlrev_b32 v{114+4*Gi}, 16, v175")
            a(f"v_and_b32 v{115+4*Gi}, 0xffff0000, v175")
        sc = [f"v{112+i}" for i in range(16)]
        a(f"v_max3_f32 v202, {sc[0]}, {sc[1]}, {sc[2]}")
        for i in range(3, 15, 2):
            a(f"v_max3_f32 v202, v202, {sc[i]}, {sc[i+1]}")
        a(f"v_max_f32 v202, v202, {sc[15]}")
        self.xrow(["v202"], ["v171"], op="max")
        a("s_lshl_b32 s52, s4, 2")
        a("v_mov_b32 v171, s52")
        a(f"ds_write_b32 v171, v202 offset:{L_MW}")
        a(f"s_mov_b32 s52, {LOG2E:#x}")
        for x in sc: a(f"v_sub_f32 {x}, {x}, v202")
        for x in sc: a(f"v_mul_f32 {x}, s52, {x}")
        for x in sc: a(f"v_exp_f32 {x}, {x}")
        a(f"v_add_f32 v201, {sc[0]}, {sc[1]}")
        for i in range(2, 16): a(f"v_add_f32 v201, v201, {sc[i]}")
        self.xrow(["v201"], ["v171"])
        for x in sc: a(f"v_cvt_pk_bf16_f32 {x}, {x}, {x}")
        self.stamp(3)

    def mlp_loads(self):
        a = self.a
        a("v_lshlrev_b32 v171, 1, v11")
        for c in range(3):
            a(f"global_load_ushort v{192+c}, v171, s[36:37] offset:{1024*c}")
            a(f"global_load_ushort v{195+c}, v171, s[38:39] offset:{1024*c}")
            a(f"global_load_ushort v{198+c}, v171, s[40:41] offset:{1024*c}")
        a("v_mov_b32 v172, 0")
        a("global_load_ushort v203, v172, s[42:43]")

    def wo_loads(self):
        a = self.a
        a("s_mul_i32 s52, s5, 192")
        a("s_mul_i32 s53, s6, 24")
        a("s_add_u32 s52, s52, s53")
        a("s_mul_i32 s52, s52, 1280")
        a("s_lshl_b32 s53, s4, 8")
        a("s_add_u32 s52, s52, s53")
        a("v_mul_u32_u24 v171, 1280, v2")
        a("v_lshl_add_u32 v171, v1, 4, v171")
        for i in range(6):
            a(f"buffer_load_dwordx4 v[{204+4*i}:{207+4*i}], v171, s[28:31], s52 offen nt")
            if i < 5: a("s_add_u32 s52, s52, 5120")

    def pv(self, extra):
        a = self.a
        for k in range(8): a(f"v_mov_b32 v{136+k}, 0")
        a("s_mov_b32 s54, 0xff00ff00\ns_mov_b32 s55, 0xff00ff00")
        for Gi in range(4):
            base = 16 + 24 * Gi
            pp = [f"v{112+4*Gi+r}" for r in range(4)]
            for r in range(4):
                for w in range(4):
                    a(f"v_and_b32 v{144+4*r+w}, {pp[r]}, v{5+w}")
            for t in range(2):
                a(f"v_cndmask_b32 v171, {pp[2*t]}, {pp[2*t+1]}, s[54:55]")
                for w in range(4):
                    a(f"v_and_b32 v{160+4*t+w}, v171, v{5+w}")
            a(f"s_waitcnt vmcnt({6*(3-Gi)+extra})")
            for r in range(4):
                a(f"v_mfma_f32_16x16x32_bf16 v[136:139], v[{base+4*r}:{base+4*r+3}], v[{144+4*r}:{147+4*r}], v[136:139]")
                if r < 2:
                    a(f"v_mfma_f32_16x16x32_bf16 v[140:143], v[{base+16+4*r}:{base+19+4*r}], v[{160+4*r}:{163+4*r}], v[140:143]")

    def wgmax(self, nm):
        a = self.a
        a("v_and_b32 v171, 7, v0")
        a("v_lshlrev_b32 v171, 2, v171")
        a("s_mov_b32 s58, 0")
        a.label(f"L_mw{nm}")
        a(f"ds_read_b32 v175, v171 offset:{L_MW}")
        a("s_waitcnt lgkmcnt(0)")
        a("v_cmp_eq_u32 vcc, -1, v175")
        a(f"s_cbranch_vccz L_mw{nm}_ok")
        a("s_sleep 1")
        a("s_add_u32 s58, s58, 1")
        a(f"s_cmp_lt_u32 s58, {self.spin*16}")
        a(f"s_cbranch_scc1 L_mw{nm}")
        a.label(f"L_mw{nm}_ok")
        for rot in (4, 2, 1):
            a(f"v_max_f32_dpp v175, v175, v175 row_ror:{rot} row_mask:0xf bank_mask:0xf")
        a("v_sub_f32 v174, v202, v175")
        a(f"v_mul_f32 v174, {LOG2E:#x}, v174")
        a("v_exp_f32 v174, v174")

    def wgreduce(self):
        a = self.a
        a("v_and_b32 v171, 7, v1")
        a("v_lshlrev_b32 v171, 2, v171")
        a("v_lshl_add_u32 v172, v2, 7, v171")
        a("v_and_b32 v173, 1, v2")
        a("v_lshl_add_u32 v173, v173, 7, v171")
        for k in range(8): a(f"v_mul_f32 v{136+k}, v{136+k}, v174")
        a("v_mul_f32 v201, v201, v174")
        a("s_mov_b32 exec_lo, 0x00ff00ff\ns_mov_b32 exec_hi, 0x00ff00ff")
        for r in range(4):
            a(f"ds_add_f32 v172, v{136+r} offset:{L_ACC + 32*r}")
        a("s_mov_b32 exec_lo, 0x00ff00ff\ns_mov_b32 exec_hi, 0xff00ff00")
        for r in range(4):
            a(f"ds_add_f32 v173, v{140+r} offset:{L_ACC + 512 + 32*r}")
        a("s_mov_b64 exec, 1")
        a("v_mov_b32 v173, 0")
        a(f"ds_add_f32 v173, v201 offset:{L_ACC + 768}")
        a("s_mov_b64 exec, -1")

    def publish_attn(self):
        a = self.a
        a("v_lshrrev_b32 v171, 3, v0")
        a("v_mul_u32_u24 v171, 24, v171")
        a("v_and_b32 v172, 1, v0")
        a("v_cmp_eq_u32 vcc, 1, v172")
        a("v_mul_u32_u24 v172, 12, v172")
        a("v_bfe_u32 v173, v0, 1, 2")
        a("v_add3_u32 v171, v171, v172, v173")
        a("v_lshlrev_b32 v171, 2, v171")
        a("v_mov_b32 v172, 0")
        a(f"ds_read_b32 v176, v171 offset:{L_ACC}")
        a(f"ds_read_b32 v177, v171 offset:{L_ACC+16}")
        a(f"ds_read_b32 v178, v171 offset:{L_ACC+32}")
        a(f"ds_read_b32 v179, v172 offset:{L_ACC+768}")
        a("s_lshl_b32 s52, s5, 3")
        a("s_add_u32 s52, s52, s6")
        a("s_lshl_b32 s52, s52, 10")
        a(f"s_add_u32 s52, s52, {AX}")
        a("v_lshlrev_b32 v171, 4, v0")
        a("s_waitcnt lgkmcnt(0)")
        a("v_cndmask_b32 v179, v175, v179, vcc")
        self.tagv(["v176", "v177", "v178", "v179"])
        a(f"buffer_store_dwordx4 v[176:179], v171, s[20:23], s52 offen {self.intra}")

    def gemv_stage(self):
        a = self.a
        a("s_add_u32 s9, s10, 1")
        a(f"s_and_b32 s9, s9, {TAGMASK}")
        a("v_bfe_u32 v171, v0, 1, 3")
        a("v_lshlrev_b32 v171, 10, v171")
        a("v_and_b32 v172, 1, v0")
        a("v_lshl_add_u32 v172, v2, 1, v172")
        a("v_lshl_add_u32 v171, v172, 4, v171")
        a("s_lshl_b32 s52, s5, 13")
        a("s_lshl_b32 s53, s6, 7")
        a("s_add_u32 s52, s52, s53")
        a(f"s_add_u32 s52, s52, {AX}")
        a("s_mov_b32 s54, 0xaaaaaaaa\ns_mov_b32 s55, 0xaaaaaaaa")
        def loads():
            a(f"buffer_load_dwordx4 v[176:179], v171, s[20:23], s52 offen sc1")
        self.poll("apoll", loads, [["v176", "v177", "v178", "v179"]], "v172", "v173")
        self.stamp(6)
        a("v_and_b32 v179, v15, v179")
        a("v_mov_b32_dpp v180, v179 quad_perm:[1,0,3,2] row_mask:0xf bank_mask:0xf")
        a("v_cndmask_b32 v181, v179, v180, s[54:55]")
        a("v_cndmask_b32 v182, v180, v179, s[54:55]")
        a("v_mov_b32 v183, v181")
        for rot in (2, 4, 8):
            a(f"v_max_f32_dpp v183, v183, v183 row_ror:{rot} row_mask:0xf bank_mask:0xf")
        a("v_sub_f32 v181, v181, v183")
        a(f"v_mul_f32 v181, {LOG2E:#x}, v181")
        a("v_exp_f32 v181, v181")
        for x in ("v176", "v177", "v178", "v182"):
            a(f"v_mul_f32 {x}, {x}, v181")
        for rot in (2, 4, 8):
            for x in ("v176", "v177", "v178", "v182"):
                a(f"v_add_f32_dpp {x}, {x}, {x} row_ror:{rot} row_mask:0xf bank_mask:0xf")
        a("v_rcp_f32 v183, v182")
        for x in ("v176", "v177", "v178"):
            a(f"v_mul_f32 v184, {x}, v183")
            a(f"v_fma_f32 v185, -v184, v182, {x}")
            a(f"v_fma_f32 {x}, v185, v183, v184")
        for x in ("v176", "v177", "v178"):
            a(f"v_cvt_pk_bf16_f32 {x}, {x}, {x}")
        for c in range(3):
            a(f"v_mov_b32_dpp v{180+c}, v{176+c} quad_perm:[1,0,3,2] row_mask:0xf bank_mask:0xf")
        for c in range(3):
            a(f"v_cndmask_b32 v{186+c}, v{176+c}, v{180+c}, s[54:55]")
            a(f"v_cndmask_b32 v{189+c}, v{180+c}, v{176+c}, s[54:55]")
        for k in range(4): a(f"v_mov_b32 v{136+k}, 0")
        for i in range(6):
            for w in range(4):
                a(f"v_and_b32 v{144+4*i+w}, v{186+i}, v{5+w}")
        for i in range(6):
            a(f"v_mfma_f32_16x16x32_bf16 v[136:139], v[{204+4*i}:{207+4*i}], v[{144+4*i}:{147+4*i}], v[136:139]")
        a("s_lshl_b32 s52, s8, 5")
        a("s_add_u32 s53, s52, s7")
        a("s_mul_i32 s53, s53, 2560")
        a("s_lshl_b32 s56, s4, 9")
        a("s_add_u32 s53, s53, s56")
        a(f"s_add_u32 s53, s53, {YX}")
        a("v_lshl_add_u32 v171, v2, 3, v1")
        a("v_lshlrev_b32 v171, 4, v171")
        self.tagv([f"v{136+k}" for k in range(4)])
        a("s_mov_b32 exec_lo, 0x00ff00ff\ns_mov_b32 exec_hi, 0x00ff00ff")
        a(f"buffer_store_dwordx4 v[136:139], v171, s[20:23], s53 offen {self.intra}")
        a("s_mov_b64 exec, -1")
        self.stamp(7)
        a("s_mul_i32 s52, s52, 2560")
        a("s_mul_i32 s53, s7, 5")
        a("s_add_u32 s53, s53, s4")
        a("s_lshl_b32 s53, s53, 4")
        a("s_add_u32 s52, s52, s53")
        a(f"s_add_u32 s52, s52, {YX}")
        a("v_and_b32 v171, 31, v0")
        a("v_mul_u32_u24 v171, 2560, v171")
        def loads2():
            a(f"buffer_load_dwordx4 v[176:179], v171, s[20:23], s52 offen sc1")
        self.poll("ypoll", loads2, [["v176", "v177", "v178", "v179"]], "v172", "v173")
        self.stamp(8)
        ys = ["v176", "v177", "v178", "v179"]
        for rot in (8, 4, 2, 1):
            for x in ys:
                a(f"v_add_f32_dpp {x}, {x}, {x} row_ror:{rot} row_mask:0xf bank_mask:0xf")
        self.xrow(ys, ["v180", "v181", "v182", "v183"], steps=("16",))
        self.tagv(ys)
        a("s_mul_i32 s52, s8, 2560")
        a("s_add_u32 s52, s52, s53")
        a(f"s_add_u32 s52, s52, {YB}")
        a("v_mov_b32 v171, 0")
        a("s_mov_b64 exec, 1")
        a(f"buffer_store_dwordx4 v[176:179], v171, s[20:23], s52 offen {self.cross}")
        a("s_mov_b64 exec, -1")

    def hopB(self):
        a = self.a
        a("s_movk_i32 s52, 160")
        a("v_cmp_gt_u32 vcc, s52, v11")
        a("s_and_saveexec_b64 s[56:57], vcc")
        a("v_lshlrev_b32 v171, 4, v11")
        a(f"s_mov_b32 s52, {YB}")
        a(f"s_mov_b32 s53, {YB+2560*2}")
        a(f"s_mov_b32 s59, {YB+2560*4}")
        a(f"s_mov_b32 s60, {YB+2560*6}")
        def loads():
            for j in range(8):
                so = ("s52", "s53", "s59", "s60")[j // 2]
                a(f"buffer_load_dwordx4 v[{16+4*j}:{19+4*j}], v171, s[20:23], {so} offen offset:{2560*(j%2)} sc1")
        self.poll("bpoll", loads, [[f"v{16+4*j+k}" for k in range(4)] for j in range(8)], "v172", "v173")
        self.stamp(9)
        for k in range(4):
            a(f"v_add_f32 v{16+k}, v{16+k}, v{20+k}")
            a(f"v_add_f32 v{24+k}, v{24+k}, v{28+k}")
            a(f"v_add_f32 v{32+k}, v{32+k}, v{36+k}")
            a(f"v_add_f32 v{40+k}, v{40+k}, v{44+k}")
        for k in range(4):
            a(f"v_add_f32 v{16+k}, v{16+k}, v{24+k}")
            a(f"v_add_f32 v{32+k}, v{32+k}, v{40+k}")
        for k in range(4):
            a(f"v_add_f32 v{16+k}, v{16+k}, v{32+k}")
        a("v_lshrrev_b32 v171, 3, v11")
        a("v_lshlrev_b32 v171, 5, v171")
        a("v_and_b32 v172, 7, v11")
        a("v_add_u32 v171, v171, v172")
        a("v_lshlrev_b32 v171, 2, v171")
        for k in range(4):
            a(f"ds_read_b32 v{20+k}, v171 offset:{L_XS + 32*k}")
        self.rbf2("v16", "v17", "v172")
        self.rbf2("v18", "v19", "v173")
        a("s_waitcnt lgkmcnt(0)")
        for k in range(4):
            a(f"v_add_f32 v{16+k}, v{16+k}, v{20+k}")
        self.rbf2("v16", "v17", "v172")
        self.rbf2("v18", "v19", "v173")
        for k in range(4):
            a(f"ds_write_b32 v171, v{16+k} offset:{L_HS + 32*k}")
        a("s_mov_b64 exec, s[56:57]")
        a("s_waitcnt lgkmcnt(0)")

    def final(self):
        a = self.a
        a("v_lshlrev_b32 v171, 2, v0")
        xs = [f"v{16+i}" for i in range(10)]
        for i in range(10):
            a(f"ds_read_b32 {xs[i]}, v171 offset:{L_HS + 256*i}")
        a("s_lshl_b32 s52, s2, 4")
        a("v_mov_b32 v172, s52")
        a(f"ds_read_b128 v[28:31], v172 offset:{L_HS}")
        for c in range(9):
            a(f"v_lshlrev_b32 v{192+c}, 16, v{192+c}")
        a("v_lshlrev_b32 v203, 16, v203")
        a("s_waitcnt lgkmcnt(0)")
        for k in range(4): a(f"v_mov_b32 v{32+k}, v{28+k}")
        tg = [f"v{32+k}" for k in range(4)]
        self.ln_stats(xs, "f1")
        self.ln_apply(xs + tg, newton=True)
        self.ln_stats(xs, "f2")
        self.ln_apply(tg, newton=True)
        self.stamp(10)
        C0 = 0xC0135761
        C1 = 0xBDD2D3E8
        a(f"s_mov_b32 s52, {C0:#x}")
        a(f"s_mov_b32 s53, {C1:#x}")
        for k in range(4): a(f"v_mov_b32 v{36+k}, 0")
        for f in range(3):
            u = [f"v{40+k}" for k in range(4)]
            for k in range(4): a(f"v_mul_f32 {u[k]}, {tg[k]}, v{192+f}")
            self.rbf2(u[0], u[1], "v171"); self.rbf2(u[2], u[3], "v172")
            for k in range(4): a(f"v_add_f32 {u[k]}, {u[k]}, v{195+f}")
            self.rbf2(u[0], u[1], "v171"); self.rbf2(u[2], u[3], "v172")
            e = [f"v{44+k}" for k in range(4)]
            for k in range(4): a(f"v_mul_f32 {e[k]}, {u[k]}, {u[k]}")
            a("v_mov_b32 v173, s52")
            for k in range(4): a(f"v_fma_f32 {e[k]}, {e[k]}, s53, v173")
            for k in range(4): a(f"v_mul_f32 {e[k]}, {e[k]}, {u[k]}")
            for k in range(4): a(f"v_exp_f32 {e[k]}, {e[k]}")
            for k in range(4): a(f"v_add_f32 {e[k]}, 1.0, {e[k]}")
            for k in range(4): a(f"v_rcp_f32 {e[k]}, {e[k]}")
            for k in range(4): a(f"v_mul_f32 {e[k]}, {e[k]}, {u[k]}")
            self.rbf2(e[0], e[1], "v171"); self.rbf2(e[2], e[3], "v172")
            for k in range(4): a(f"v_fmac_f32 v{36+k}, {e[k]}, v{198+f}")
        acc = [f"v{36+k}" for k in range(4)]
        self.allreduce(acc, ["v171", "v172", "v173", "v174"])
        a("s_lshl_b32 s52, s4, 4")
        a("v_mov_b32 v171, s52")
        a("s_mov_b64 exec, 1")
        a(f"ds_write_b128 v171, v[36:39] offset:{L_RED}")
        a("s_mov_b64 exec, -1")
        a("s_waitcnt lgkmcnt(0)")
        a("s_barrier")
        a("s_cmp_eq_u32 s4, 0")
        a("s_cbranch_scc0 L_done")
        a("v_and_b32 v171, 7, v0")
        a("v_lshlrev_b32 v171, 4, v171")
        a(f"ds_read_b128 v[36:39], v171 offset:{L_RED}")
        a("s_waitcnt lgkmcnt(0)")
        for rot in (4, 2, 1):
            for x in acc:
                a(f"v_add_f32_dpp {x}, {x}, {x} row_ror:{rot} row_mask:0xf bank_mask:0xf")
        self.rbf2(acc[0], acc[1], "v171"); self.rbf2(acc[2], acc[3], "v172")
        for x in acc: a(f"v_add_f32 {x}, {x}, v203")
        self.rbf2(acc[0], acc[1], "v171"); self.rbf2(acc[2], acc[3], "v172")
        for k in range(4): a(f"v_add_f32 {acc[k]}, {acc[k]}, v{28+k}")
        a(f"v_cvt_pk_bf16_f32 v40, {acc[0]}, {acc[1]}")
        a(f"v_cvt_pk_bf16_f32 v41, {acc[2]}, {acc[3]}")
        a("s_lshl_b32 s52, s2, 3")
        a("v_mov_b32 v171, s52")
        a("s_mov_b64 exec, 1")
        a("global_store_dwordx2 v171, v[40:41], s[44:45]")
        a("s_cmp_eq_u32 s2, 0")
        a("s_cbranch_scc0 L_nobump")
        a("s_add_u32 s52, s10, 1")
        a("v_mov_b32 v172, s52")
        a("v_mov_b32 v173, 0")
        a("buffer_store_dword v172, v173, s[20:23], 0 offen sc1")
        a.label("L_nobump")
        a("s_mov_b64 exec, -1")

    def dump_stamps(self):
        if not self.stamps: return
        a = self.a
        a("s_memrealtime s[86:87]")
        a("s_waitcnt lgkmcnt(0)")
        a("s_lshl_b32 s52, s2, 3")
        a("s_add_u32 s52, s52, s4")
        a("s_lshl_b32 s52, s52, 6")
        a(f"s_add_u32 s52, s52, {STAMP}")
        for i in range(12):
            a(f"v_mov_b32 v{16+i}, s{64+2*i}")
        a("v_mov_b32 v171, 0")
        a("s_mov_b64 exec, 1")
        for q in range(3):
            a(f"buffer_store_dwordx4 v[{16+4*q}:{19+4*q}], v171, s[20:23], s52 offen offset:{16*q}")
        a("s_waitcnt vmcnt(0)")

    def init_stamps(self):
        if not self.stamps: return
        for i in range(1, 12):
            self.a(f"s_mov_b32 s{64+2*i}, 0")

    def build(self):
        a = self.a
        self.init_stamps()
        self.prologue()
        self.qloads()
        a("s_cmp_ge_u32 s4, 4")
        a("s_cbranch_scc1 L_young")
        a("s_setprio 2")
        self.kvloads("s[12:15]", [0, 1])
        self.qphase(1)
        self.stamp(1)
        self.kvloads("s[12:15]", [2, 3])
        self.qk("o")
        a("s_setprio 1")
        self.mlp_loads()
        self.kvloads("s[16:19]", [0, 1, 2, 3])
        self.stamp(4)
        self.pv(0)
        self.wgmax("o")
        a("s_nop 7")
        self.wgreduce()
        a("s_setprio 0")
        self.wo_loads()
        a("s_branch L_join")
        a.label("L_young")
        self.qphase(0)
        self.stamp(1)
        a("s_cmp_eq_u32 s4, 7")
        a("s_cbranch_scc0 L_noqx")
        self.qexchange()
        a.label("L_noqx")
        a("s_setprio 2")
        self.kvloads("s[12:15]", [0, 1, 2, 3])
        self.qk("y")
        a("s_setprio 1")
        self.mlp_loads()
        self.kvloads("s[16:19]", [0, 1, 2, 3])
        a("s_cmp_eq_u32 s4, 4")
        a("s_cbranch_scc0 L_nowo")
        self.wo_loads()
        self.stamp(4)
        self.wgmax("y4")
        self.pv(6)
        a("s_branch L_pvdone")
        a.label("L_nowo")
        self.stamp(4)
        self.wgmax("y")
        self.pv(0)
        a.label("L_pvdone")
        a("s_nop 7")
        self.wgreduce()
        a.label("L_join")
        a("s_setprio 3")
        a("s_waitcnt lgkmcnt(0)")
        a("s_barrier")
        self.stamp(5)
        a("s_add_u32 s9, s10, 1")
        a(f"s_and_b32 s9, s9, {TAGMASK}")
        a("s_cmp_eq_u32 s4, 7")
        a("s_cbranch_scc0 L_nopub")
        self.publish_attn()
        a.label("L_nopub")
        a("s_cmp_le_u32 s4, 4")
        a("s_cbranch_scc0 L_nogemv")
        self.gemv_stage()
        a.label("L_nogemv")
        a("s_cmp_lt_u32 s2, 160")
        a("s_cbranch_scc0 L_done")
        a("s_cmp_le_u32 s4, 2")
        a("s_cbranch_scc0 L_nohopb")
        self.hopB()
        a.label("L_nohopb")
        a("s_waitcnt vmcnt(0) lgkmcnt(0)")
        a("s_barrier")
        self.final()
        a.label("L_done")
        self.dump_stamps()
        a.label("L_end")
        lines = hazard.fix(a.lines, report=True)
        body = "\n".join(lines) + "\n"
        s = single_kernel_file(body, 256, 512, LDS_BYTES, 232, 96)
        if self.stamps:
            s = s.replace("; @launch", f"; STAMPS wgs=256 nw=8 ncol=12 stride=16 off={STAMP}\n; @launch", 1)
        return s

if __name__ == "__main__":
    out = "dev/"
    open(out + "f1.s", "w").write(G(stamps=False).build())
    open(out + "f1_st.s", "w").write(G(stamps=True).build())
```
